```python
import torch

def _softmax(x, axis=-1):
    return torch.softmax(x, dim=axis)
def _gelu(x):
    return torch.nn.functional.gelu(x, approximate="tanh")
def _silu(x):
    return torch.nn.functional.silu(x)
def _sigmoid(x):
    return torch.sigmoid(x)
def _layernorm(x, axis=-1, eps=1e-5):
    m = x.mean(dim=axis, keepdim=True)
    v = x.var(dim=axis, keepdim=True, unbiased=False)
    return (x - m) / torch.sqrt(v + eps)
def _scatter_add(tgt, idx, src, axis=0):
    return tgt.clone().index_add_(axis, idx, src)
def _segment_sum(src, seg, n):
    out = torch.zeros((n,) + src.shape[1:], dtype=src.dtype)
    return out.index_add_(0, seg, src)
def _pad(x, pw):
    flat = tuple(v for pair in reversed(pw) for v in pair)
    return torch.nn.functional.pad(x, flat)

kernel_name = 'standalone__linear_kernel_rfa__decode'

def setup_inputs():

    _w = (lambda a: (lambda t: t.to(torch.bfloat16) if t.is_floating_point() else t)(torch.as_tensor(a)))
    B, H, Sq, Sk, D, M = 4, 32, 1, 8192, 128, 16
    return {
        "q": _w((lambda *s: torch.randn(*s, dtype=torch.bfloat16) * 0.4)(B, H, Sq, D)),
        "k": _w((lambda *s: torch.randn(*s, dtype=torch.bfloat16) * 1.6)(B, H, Sk, D)),
        "v": _w((lambda *s: torch.randn(*s, dtype=torch.bfloat16) * 1.6)(B, H, Sk, D)),
        "omega": _w((lambda *s: torch.randn(*s, dtype=torch.bfloat16) * 1.6)(M, D)),
    }

def reference(q, k, v, omega):
    d = q.shape[-1]
    m = omega.shape[0]
    scale = float(d) ** -0.25
    qs = q * scale
    ks = k * scale
    q_proj = torch.einsum("bhsd,md->bhsm", qs, omega)
    k_proj = torch.einsum("bhsd,md->bhsm", ks, omega)
    q_sq = 0.5 * torch.einsum("bhsd,bhsd->bhs", qs, qs)[..., None]
    k_sq = 0.5 * torch.einsum("bhsd,bhsd->bhs", ks, ks)[..., None]
    inv_sqrt_m = float(m) ** -0.5
    phi_q = torch.exp(q_proj - q_sq) * inv_sqrt_m + 1e-6
    phi_k = torch.exp(k_proj - k_sq) * inv_sqrt_m + 1e-6
    kv = torch.einsum("bhsm,bhsd->bhmd", phi_k, v)
    z  = torch.einsum("bhsm->bhm", phi_k)
    num = torch.einsum("bhqm,bhmd->bhqd", phi_q, kv)
    den = torch.einsum("bhqm,bhm->bhq", phi_q, z)[..., None] + 1e-6
    return num / den
```

```python
import re
TRANS = ("v_exp_f32","v_log_f32","v_rcp_f32","v_rsq_f32","v_sqrt_f32","v_sin_f32","v_cos_f32")
def regs(op):
    op = op.strip().lstrip("-")
    m = re.fullmatch(r"abs\((.*)\)", op)
    if m: op = m.group(1)
    m = re.fullmatch(r"([vsa])(\d+)", op)
    if m: return {(m.group(1), int(m.group(2)))}
    m = re.fullmatch(r"([vsa])\[(\d+):(\d+)\]", op)
    if m: return {(m.group(1), i) for i in range(int(m.group(2)), int(m.group(3))+1)}
    if op == "vcc": return {("s","vcc")}
    if op == "m0": return {("s","m0")}
    if op == "exec": return {("s","exec")}
    return set()
class Ins:
    def __init__(self, text):
        self.text = text
        t = text.split(";")[0].strip()
        self.label = t.endswith(":")
        self.directive = t.startswith(".")
        self.op = t.split()[0] if t else ""
        rest = t[len(self.op):].strip()
        ops = [o.strip() for o in re.split(r",(?![^\[]*\])", rest)] if rest else []
        if ops:
            last = ops[-1].split()
            ops[-1] = last[0] if last else ""
            self.mods = last[1:]
        else: self.mods = []
        self.ops = ops
        op = self.op
        self.mfma = op.startswith("v_mfma")
        self.valu = op.startswith("v_") and not self.mfma
        self.vmem = op.startswith(("buffer_","global_","flat_"))
        self.ds = op.startswith("ds_")
        self.salu = op.startswith("s_")
        self.trans = op.replace("_e32","").replace("_e64","") in TRANS
        self.dpp = "_dpp" in op or any(m.startswith(("quad_perm","row_")) for m in self.mods)
        self.permlane = op.startswith("v_permlane")
        self.lds_dma = self.vmem and "lds" in self.mods
        R = [regs(o) for o in ops]
        w, r = set(), set()
        self.A = self.B = self.C = set()
        if self.label or self.directive or not op: pass
        elif self.mfma:
            w = R[0]; self.A, self.B, self.C = R[1], R[2], R[3]; r = R[1]|R[2]|R[3]
            self.passes = {"v_mfma_f32_16x16x32_bf16":4, "v_mfma_f32_16x16x4_f32":8, "v_mfma_f32_16x16x16_bf16":4, "v_mfma_f32_16x16x16_bf16_1k":4, "v_mfma_f32_32x32x16_bf16":8}[op]
            self.sgemm = op.endswith("_f32") and op.count("f32")==2
        elif self.permlane:
            w = R[0]|R[1]; r = R[0]|R[1]
        elif op.startswith(("v_div_scale","v_add_co","v_sub_co","v_addc_co")):
            w = R[0]|R[1]; r = set().union(*R[2:])
        elif self.valu:
            w = R[0]; r = set().union(*R[1:]) if len(R)>1 else set()
            if op.startswith(("v_fmac","v_dot2c")) or self.dpp or "sdwa" in op or op.startswith("v_writelane"): r = r|R[0]
            if op.startswith("v_div_fmas"): r = r|{("s","vcc")}
            if op.startswith("v_cmpx"): w = w|{("s","exec")}
        elif self.vmem:
            if self.lds_dma: r = set().union(*R)|{("s","m0")}
            elif "_load" in op: w = R[0]; r = set().union(*R[1:])
            elif "_atomic" in op and "sc0" in self.mods:
                w = R[0]; r = set().union(*R) if op.startswith("buffer") else set().union(*R[1:])
            else: r = set().union(*R)
            self.wide_store = "_store" in op and ("x3" in op or "x4" in op)
            if self.wide_store: self.data = R[0] if op.startswith("buffer") else R[1]
        elif self.ds:
            if "_read" in op or "permute" in op or "swizzle" in op: w = R[0]; r = set().union(*R[1:])
            else: r = set().union(*R)
        elif self.salu:
            if op.startswith(("s_cmp","s_bitcmp","s_cbranch","s_branch","s_waitcnt","s_nop","s_barrier","s_endpgm","s_setprio","s_sleep")): r = set().union(*R) if R else set()
            else:
                w = R[0] if R else set(); r = set().union(*R[1:]) if len(R)>1 else set()
                if "saveexec" in op: w = w|{("s","exec")}
        self.w, self.r = w, r
    def states(self):
        if self.label or self.directive or not self.op: return 0
        if self.op == "s_nop": return int(self.ops[0])+1
        return 1
def need(p, c):
    n = 0
    vw = {x for x in p.w if x[0] in "va"}; sw = {x for x in p.w if x[0]=="s"}
    if p.valu:
        if c.mfma and (vw & c.r): n = max(n,2)
        if c.mfma and ("s","exec") in sw: n = max(n,4)
        if c.valu and c.dpp and (vw & c.r): n = max(n,2)
        if c.valu and c.dpp and ("s","exec") in sw: n = max(n,5)
        if c.permlane and (vw & c.r): n = max(n,2)
        if c.op.startswith(("v_readlane","v_readfirstlane")) and (vw & c.r): n = max(n,1)
        if c.op.startswith(("v_readlane","v_readfirstlane","v_writelane","v_permlane")) and ("s","exec") in sw: n = max(n,4)
        if p.trans and c.valu and not c.trans and (vw & c.r): n = max(n,1)
        if p.trans and c.mfma and (vw & c.r): n = max(n,2)
        if ("sdwa" in p.op or "op_sel" in " ".join(p.mods)) and c.valu and (vw & (c.r|c.w)): n = max(n,1)
        if c.vmem and (sw & c.r): n = max(n,5)
        if c.valu and (sw & c.r):
            n = max(n, 4 if c.op.startswith(("v_div_fmas","v_readlane","v_writelane")) else 2)
        if c.salu and (sw & c.r): n = max(n,1)
        if p.op.startswith("v_dot") and (c.valu or c.mfma or c.vmem or c.ds) and (vw & (c.r|c.w)):
            if not (c.op==p.op and not (vw & set().union(*[regs(o) for o in c.ops[1:3]]))): n = max(n,3)
    if p.salu and ("s","m0") in sw and c.lds_dma: n = max(n,1)
    if p.mfma:
        P = p.passes
        if not p.sgemm:
            if c.mfma:
                if vw & (c.A|c.B): n = max(n, {2:5,4:8,8:12,16:20}[P])
                if vw & c.C:
                    if c.sgemm: n = max(n, {2:3,4:6,8:10,16:18}[P])
                    elif c.C == vw and c.passes == P: n = max(n, 2 if P==2 else 0)
                    else: n = max(n, {2:4,4:6,8:10,16:18}[P])
                if (vw & c.w) and not (vw & c.C): n = max(n, {2:5,4:8,8:12,16:20}[P])
            elif (c.valu or c.vmem or c.ds) and (vw & (c.r|c.w)): n = max(n, {2:5,4:8,8:12,16:20}[P])
            if c.valu and (p.C & c.w): n = max(n, {2:1,4:3,8:7,16:15}[P])
        else:
            if c.mfma:
                if vw & (c.A|c.B): n = max(n, {2:4,4:6,8:10,16:18}[P])
                if vw & c.C:
                    if c.sgemm: n = max(n, (2 if P==2 else 0) if c.C==vw else {2:2,4:4,8:8,16:16}[P])
                if (vw & c.w) and not (vw & c.C): n = max(n, {2:4,4:6,8:10,16:18}[P])
            elif (c.valu or c.vmem or c.ds) and (vw & (c.r|c.w)): n = max(n, {2:4,4:6,8:10,16:18}[P])
    if p.vmem and getattr(p,"wide_store",False) and (p.data & c.w): n = max(n,2)
    return n
def mark_regions(lines):
    labels = {t[:-1]: i for i, t in enumerate(lines) if t.endswith(":")}
    reg = [set() for _ in lines]
    for i, t in enumerate(lines):
        w = t.split()
        if w and w[0].startswith(("s_cbranch", "s_branch")) and w[1] in labels and labels[w[1]] > i:
            for k in range(i+1, labels[w[1]]): reg[k].add((id(lines), i))
    return reg
def pad(lines, history=None):
    out = []; hist = list(history or [])
    reg = mark_regions(lines)
    for t, rg in zip(lines, reg):
        c = Ins(t); c.reg = rg
        if c.states() == 0:
            out.append(t); continue
        dist = 0; req = 0
        for p in reversed(hist):
            if dist >= 24: break
            nd = need(p, c)
            if nd - dist > req: req = nd - dist
            if getattr(p, "reg", set()) <= rg: dist += p.states()
        while req > 0:
            k = min(req, 16)
            n = Ins(f"s_nop {k-1}"); n.reg = rg
            out.append(n.text); hist.append(n); req -= k
        out.append(t); hist.append(c)
        if len(hist) > 160: hist = hist[-120:]
    return out
def hist_of(lines, n=120):
    reg = mark_regions(lines); h = []
    for t, rg in list(zip(lines, reg))[-n:]:
        c = Ins(t); c.reg = rg; h.append(c)
    return h
def check_seq(lines):
    return len(pad(lines)) == len(lines)
```

```python
import sys, struct
from asmlib import pad, Ins, need, hist_of
KN = "standalone__linear_kernel_rfa__decode_kernel"
def f2u(x): return struct.unpack("<I", struct.pack("<f", x))[0]
SCALE = f2u(128.0 ** -0.25); LOG2E = f2u(1.4426950408889634)
EPS = 0x35860000
HEADER = open("standalone__linear_kernel_rfa__decode.s.ref").read().split("; Override launch")[0]

def merge(streams, hist):
    streams = [list(s) for s in streams if s]; out = []; h = [Ins(t) for t in hist[-24:]]
    def req(t):
        c = Ins(t); dist = 0; r = 0
        for p in reversed(h):
            if dist >= 24: break
            r = max(r, need(p, c) - dist); dist += p.states()
        return r
    while streams:
        rs = [req(s[0]) for s in streams]
        k = next((i for i, r in enumerate(rs) if r <= 0), None)
        if k is None: k = min(range(len(rs)), key=lambda i: rs[i])
        t = streams[k].pop(0); out.append(t); h.append(Ins(t))
        if not streams[k]: streams.pop(k)
    return out

def gen(T="5", Dlast=16, flags="nt", eps=EPS, stamp=0, pk=0, NT=32, bits="abhwcgwgiiiii", abl="", b2=0, pref=0, warm=0, T0=None, dump=0, Ld=0, sw=0, of="sc1", sf="sc1", fl="atom", n=0, cp="", tab="00001123", T1=6, tabm="", Tm="5", cs=4352, dp=0, swb=0, sti="1.2.4", al=8, skip=0, hin=0, tch="", pp=1, ss=16, fm=0, pr=0, sl=4, qt="", qt2="", qsw=22, qm="", qm2="", G=8, qx=2, co=0x100000, sst=1024, cadv=0, ob=3, po=0, la=0, nd=0, dq=0, Dd=16):
    W = 4
    Tp = [int(T[n % len(T)], 16) for n in range(16)]; L = max(Tp + [Ld] + ([T1] if cp else [])); T0 = T0 or min(Tp); assert L <= 11
    Tmp = [int(Tm[n % len(Tm)], 16) for n in range(16)]
    if "g" not in bits: bits = "gg" + bits
    pos = {c: [8+k for k, x in enumerate(bits) if x == c] for c in "gabcwhi"}
    assert len(bits) == 13 and sorted(bits) == sorted("ggabcwwhiiiii")
    icont = pos["i"] == list(range(pos["i"][0], pos["i"][0]+5)); imask = sum(1 << p for p in pos["i"])
    simple = pos["a"] == [10] and pos["b"] == [11]
    def jofs(j): return ((j & 1) << pos["a"][0]) | (((j >> 1) & 1) << pos["b"][0])
    vKo = [1,2,3,4]; vVo = 5; vLa = [6,7,8,9]; vEps = 10; vNH = 11
    vT = list(range(12, 20))
    vX = 20; vSl = 21; vRd = 22; vOut = 23
    vOm = 24; vKa = 40; vKb = 56; vV = 72; vB = 104; vAcc = 136; vZ = 168
    vOne = 172; vPa = 176; vGa = 180; vPb = 184; vGb = 188; vPhi = 192; vPq = 196; vN = 200
    vQ = vKa; vPoll = vKb; vOld = vKb+4
    vCw = 23; vZero = 0
    NV = 208
    sK0, sK1, sV0, sV1 = 16, 17, 18, 19
    sMa, sMb = 20, 21; sIt = 22; sFlag = 24; sWave = 25; sScale = 26; sL2e = 28; sPe = 29; sPo = 30; sFsh = 31
    sMask = [32, 34, 36, 38]; sDbg = 40; sSlot = 42; sOutP = 44; sQ = 46; sOm = 48; sTmp = 50; sRole = 52; sT2 = 53; sSt = 56; sCtr = 66; sBase = 68; sTick = 69; sPend = 70; sCw = 71; sLvl = 72; sMA = 73; sMB = 74; sT3 = 75; sQ4 = 76; sCm = 77; sTb = 78; sBn = 80
    LDS_OM = W*8192; LDS_RED = LDS_OM + 4096; LDS_PQ = LDS_RED + 4096; LDS_CW = LDS_PQ + 1024; LDS = LDS_CW + 64
    def r(b, n=4): return f"v[{b}:{b+n-1}]"
    def adv(sr):
        if icont: return adv0(sr)
        return [f"s_or_b32 s{sT3}, s{sr}, {(~imask) & 0xffffffff:#x}", f"s_add_u32 s{sT3}, s{sT3}, 1", f"s_and_b32 s{sT3}, s{sT3}, {imask:#x}",
                f"s_andn2_b32 s{sr}, s{sr}, {imask:#x}", f"s_or_b32 s{sr}, s{sr}, s{sT3}"]
    def adv0(sr): return [f"s_add_u32 s{sr}, s{sr}, {1 << pos['i'][0]:#x}"] + ([f"s_and_b32 s{sr}, s{sr}, 0x1fffff"] if NT > 32 else [])
    def load(n):
        o = []
        if n < 8:
            j = n & 3; sk = sK0 if n < 4 else sK1
            if simple:
                if j == 0: o.append(f"s_mov_b32 m0, s{sMa if n == 0 else sMb}")
                o.append(f"buffer_load_dwordx4 v{vKo[j]}, s[8:11], s{sk} offen offset:{j*1024} {flags} lds")
            else:
                o.append(f"s_add_u32 m0, s{sMa}, {n*1024}")
                o.append(f"buffer_load_dwordx4 v{vKo[j]}, s[8:11], s{sk} offen {flags} lds")
            if j == 3: o += adv(sk)
        else:
            j = n - 8; sv = sV0 if j < 4 else sV1
            c = jofs(j & 3); so = sv
            if c & ~0xfff:
                o.append(f"s_add_u32 s{sT2}, s{sv}, {c & ~0xfff}"); so = sT2
            o.append(f"buffer_load_dwordx4 {r(vV+4*j)}, v{vVo}, s[12:15], s{so} offen offset:{c & 0xfff} {flags}")
            if (j & 3) == 3: o += adv(sv)
        return o
    def issue(n, cnt):
        l = load(n); k = next(i for i, t in enumerate(l) if t.startswith("buffer"))
        return l[:k] + [f"s_waitcnt vmcnt({cnt})"] + l[k:]
    def kread(base, sub): return [f"ds_read_b128 {r(base+4*u)}, v{vLa[u]} offset:{sub*4096}" for u in range(4)]
    def conv(base, u):
        o = []
        for p in range(4):
            x = base+4*u+p; a, b = vT[2*p], vT[2*p+1]
            o += [f"v_lshlrev_b32 v{a}, 16, v{x}", f"v_and_b32 v{b}, 0xffff0000, v{x}"]
        for p in range(4):
            a, b = vT[2*p], vT[2*p+1]
            if pk: o += [f"v_pk_mul_f32 v[{a}:{b}], v[{a}:{b}], s[{sScale}:{sScale+1}]"]
            else: o += [f"v_mul_f32 v{a}, s{sScale}, v{a}", f"v_mul_f32 v{b}, s{sScale}, v{b}"]
        for p in range(4):
            x = base+4*u+p; a, b = vT[2*p], vT[2*p+1]
            o += [f"v_cvt_pk_bf16_f32 v{x}, v{a}, v{b}"]
        return o
    def kmfma(base, u, P, G, swap=False):
        c1 = "0" if u == 0 else r(P); c2 = "0" if u == 0 else r(G)
        a, b = (r(vOm+4*u), r(base+4*u)) if swap else (r(base+4*u), r(vOm+4*u))
        return [f"v_mfma_f32_16x16x32_bf16 {r(G)}, {r(base+4*u)}, {r(base+4*u)}, {c2}",
                f"v_mfma_f32_16x16x32_bf16 {r(P)}, {a}, {b}, {c1}"]
    def stage2(base, P, G):
        o = ["s_waitcnt lgkmcnt(0)"]
        for u in range(4):
            cv = conv(base, u)
            o += (cv[:2] + kmfma(base, u-1, P, G) + cv[2:]) if u > 0 else cv
        return o + kmfma(base, 3, P, G)
    def phi_tail(P):
        o = []
        for i in range(4): o.append(f"v_cvt_pk_bf16_f32 v{P+i}, 0, v{P+i}")
        for i in range(4): o.append(f"v_mul_f32 v{P+i}, s{sL2e}, v{P+i}")
        for i in range(4): o.append(f"v_exp_f32 v{P+i}, v{P+i}")
        for i in range(4): o.append(f"v_cvt_pk_bf16_f32 v{P+i}, 0, v{P+i}")
        for i in range(4): o.append(f"v_fmamk_f32 v{P+i}, v{P+i}, 0x3e800000, v{vEps}")
        return o
    def stage3(P, G, dst):
        o = [f"v_cndmask_b32 v{vX}, 0, v{G}, s[{sMask[0]}:{sMask[0]+1}]"]
        for i in range(1, 4): o.append(f"v_cndmask_b32 v{vX}, v{vX}, v{G+i}, s[{sMask[i]}:{sMask[i]+1}]")
        o.append(f"v_cvt_pk_bf16_f32 v{vX}, 0, v{vX}")
        for i in range(4): o.append(f"v_cvt_pk_bf16_f32 v{P+i}, 0, v{P+i}")
        o.append(f"v_mfma_f32_16x16x4_f32 {r(P)}, v{vX}, v{vNH}, {r(P)}")
        o += phi_tail(P)
        o += [f"v_cvt_pk_bf16_f32 v{dst}, v{P}, v{P+1}", f"v_cvt_pk_bf16_f32 v{dst+1}, v{P+2}, v{P+3}"]
        return o
    def perms(q):
        return [f"v_perm_b32 v{vB+4*i+q}, v{vV+4*(2*q+1)+(i>>1)}, v{vV+4*(2*q)+(i>>1)}, s{sPo if i&1 else sPe}" for i in range(8)]
    def pv():
        p = perms(3); m = [f"v_mfma_f32_16x16x32_bf16 {r(vAcc+4*i)}, {r(vPhi)}, {r(vB+4*i)}, {r(vAcc+4*i)}" for i in range(8)]
        o = p[:3]
        for i in range(8):
            if i+3 < 8: o.append(p[i+3])
            o.append(m[i])
        return o
    zm = [f"v_mfma_f32_16x16x32_bf16 {r(vZ)}, {r(vPhi)}, {r(vOne)}, {r(vZ)}"]
    def phiq():
        o = []
        for u in range(4): o += conv(vQ, u)
        for u in range(4): o += kmfma(vQ, u, vPq, vGa, swap=True)
        o.append(f"v_cvt_pk_bf16_f32 v{vX}, 0, v{vGa}")
        for i in range(4): o.append(f"v_cvt_pk_bf16_f32 v{vPq+i}, 0, v{vPq+i}")
        for i in range(4): o.append(f"v_fma_f32 v{vPq+i}, v{vX}, -0.5, v{vPq+i}")
        o += phi_tail(vPq)
        for i in range(4): o.append(f"v_cvt_pk_bf16_f32 v{vPq+i}, 0, v{vPq+i}")
        return o
    def split(lst, k):
        n = len(lst); return [lst[(n*i)//k:(n*(i+1))//k] for i in range(k)]
    def omread(): return [f"ds_read_b128 {r(vOm+4*u)}, v{vSl} offset:{LDS_OM+1024*u}" for u in range(4)]
    def body(last):
        work = {n: [] for n in range(16)}
        A2 = stage2(vKa, vPa, vGa); A3 = stage3(vPa, vGa, vPhi); B2 = stage2(vKb, vPb, vGb); B3 = stage3(vPb, vGb, vPhi+2)
        if not last:
            omb = [f"s_cmp_lg_u32 s{sIt}, {NT-1}", "s_cbranch_scc1 L_noom", "s_waitcnt lgkmcnt(0)", "s_barrier"] + omread()
            work[3] = (omb + ["L_noom:"] if ob == 3 else []) + kread(vKa, 0)
            if b2: work[0] = [f"s_cmp_lg_u32 s{sIt}, {b2}", "s_cbranch_scc1 L_nob2", "s_barrier", "L_nob2:"]
            for i, c in enumerate(split(A2, 4)): work[4+i] += c
            if ob != 3:
                k5 = next(i for i, t in enumerate(work[5]) if t.startswith("v_mfma"))
                assert not any(t.startswith("v_mfma") for t in work[4])
                if ob == 4: work[4] += omb + ["s_waitcnt lgkmcnt(0)", "L_noom:"]
                else: work[5] = work[5][:k5] + omb + ["s_waitcnt lgkmcnt(0)", "L_noom:"] + work[5][k5:]
            work[7] = kread(vKb, 1) + work[7]
            m = merge([A3, B2], A2)
            for i, c in enumerate(split(m, 5)): work[8+i] += c
            for i, c in enumerate(split(B3, 2)): work[13+i] += c
            work[14] += zm
            if cp:
                its = [int(x) for x in cp.split(".")]
                first = 2
                m = sum(1 << (NT-1-x) for x in its + [first])
                hexv = lambda t: sum(int(c, 16) << (4*i) for i, c in enumerate(t))
                rank = [f"s_cmp_eq_u32 s{sPend}, 0", "s_cbranch_scc1 L_nodec",
                       f"s_sub_u32 s{sTick}, s{sTick}, s{sBase}", (f"s_add_u32 s{sBase}, s{sBase}, {G}" if not cadv else f"s_mov_b32 s{sBase}, s{sBn}"),
                       f"s_max_i32 s{sTick}, s{sTick}, 0", f"s_min_i32 s{sTick}, s{sTick}, {G-1}"]
                nb = len(qt) if qt else 8
                if G > nb: rank += [f"s_lshr_b32 s{sTick}, s{sTick}, {G.bit_length()-nb.bit_length()}"]
                rank += [f"s_lshl_b32 s{sTick}, s{sTick}, 2"]
                def look(dst, t1, t2, cur):
                    if len(t1) == 16:
                        o = [f"s_mov_b32 s{sTb}, {hexv(t1) & 0xffffffff:#x}", f"s_mov_b32 s{sTb+1}, {hexv(t1) >> 32:#x}"]
                        if t2 and t2 != t1: o += [f"s_cmp_le_u32 s{sIt}, {NT-1-qsw}", f"s_cselect_b32 s{sTb}, {hexv(t2) & 0xffffffff:#x}, s{sTb}", f"s_cselect_b32 s{sTb+1}, {hexv(t2) >> 32:#x}, s{sTb+1}"]
                        o += [f"s_lshr_b64 s[{sTb}:{sTb+1}], s[{sTb}:{sTb+1}], s{sTick}", f"s_mov_b32 s{dst}, s{sTb}"]
                    elif t2 and t2 != t1: o = [f"s_mov_b32 s{dst}, {hexv(t1):#x}", f"s_cmp_le_u32 s{sIt}, {NT-1-qsw}", f"s_cselect_b32 s{dst}, {hexv(t2):#x}, s{dst}", f"s_lshr_b32 s{dst}, s{dst}, s{sTick}"]
                    else: o = [f"s_lshr_b32 s{dst}, {hexv(t1):#x}, s{sTick}"]
                    sc = [f"s_mul_i32 s{dst}, s{dst}, {qx}", f"s_lshr_b32 s{dst}, s{dst}, 1"] if qx != 2 else []
                    return o + [f"s_and_b32 s{dst}, s{dst}, 15"] + sc + [f"s_sub_u32 s{dst}, s{cur}, s{dst}", f"s_max_i32 s{dst}, s{dst}, 0"]
                if qt:
                    dec = rank + [f"s_lshl_b32 s{sT2}, s{sIt}, 2"] + look(sPend, qt, qt2, sT2)
                    if qm: dec += look(sT3, qm, qm2, sT2) + [f"s_lshl_b32 s{sT3}, s{sT3}, 8", f"s_or_b32 s{sPend}, s{sPend}, s{sT3}"]
                else:
                    dec = rank + look(sPend, tab, "", sIt)
                    if tabm: dec += look(sT3, tabm, "", sIt) + [f"s_lshl_b32 s{sT3}, s{sT3}, 8", f"s_or_b32 s{sPend}, s{sPend}, s{sT3}"]
                dec += [f"v_mov_b32 v{vCw}, s{sPend}", f"ds_write_b32 v{vZero}, v{vCw} offset:{LDS_CW}", f"s_mov_b32 s{sPend}, 0", "L_nodec:"]
                assert work[4][0] == "s_waitcnt lgkmcnt(0)"
                work[4] = work[4][:1] + dec + work[4][1:]
                work[7] = [f"ds_read_b32 v{vCw}, v{vZero} offset:{LDS_CW}"] + work[7]
                k = work[8].index("s_waitcnt lgkmcnt(0)")
                def tick(sm, tag):
                    return [f"s_bitcmp1_b32 s{sm}, s{sIt}", f"s_cbranch_scc0 L_notick{tag}",
                       f"s_cmp_eq_u32 s{sIt}, {NT-1-first}", f"s_cbranch_scc1 L_base{tag}",
                       f"s_mov_b32 s{sPend}, 1", f"s_mov_b32 s{sTick}, 1", f"s_atomic_add s{sTick}, s[{sCtr}:{sCtr+1}], 0 glc"] + ([f"s_load_dword s{sBn}, s[{sCtr}:{sCtr+1}], {cadv:#x} glc", f"s_add_u32 s{sCtr}, s{sCtr}, {cadv}", f"s_addc_u32 s{sCtr+1}, s{sCtr+1}, 0"] if cadv else []) + [f"s_branch L_notick{tag}",
                       f"L_base{tag}:", f"s_load_dword s{sBase}, s[{sCtr}:{sCtr+1}], 0 glc", f"L_notick{tag}:"]
                app = [f"v_readfirstlane_b32 s{sCw}, v{vCw}"] + tick(sMA, "a")
                if dp: work[8+dp] = tick(sMB, "b") + work[8+dp]
                if qt:
                    def ev():
                        o = [f"s_sub_u32 s{sQ4}, s{sQ4}, 1"]
                        if qm: o += [f"s_cmp_gt_u32 s{sQ4}, s{sCm}", f"s_cselect_b32 s{sLvl}, 1, 0"]
                        return o + [f"s_cmp_gt_u32 s{sQ4}, s{sCw}", "s_cselect_b64 vcc, -1, 0"]
                    if qm: app += [f"s_lshr_b32 s{sCm}, s{sCw}, 8", f"s_and_b32 s{sCw}, s{sCw}, 255"]
                    app += ev()
                    for sl_ in (12, 0, 4): work[sl_] = work[sl_] + ev()
                elif tabm:
                    app += [f"s_lshr_b32 s{sLvl}, s{sCw}, 8", f"s_cmp_gt_u32 s{sIt}, s{sLvl}", f"s_cselect_b32 s{sLvl}, 1, 0", f"s_and_b32 s{sCw}, s{sCw}, 255"]
                if not qt: app += [f"s_cmp_gt_u32 s{sIt}, s{sCw}", "s_cselect_b64 vcc, -1, 0"]
                if swb: app += [f"s_cmp_le_u32 s{sIt}, {swb}", "s_cselect_b64 vcc, -1, vcc"]
                work[8] = work[8][:k+1] + app + work[8][k+1:]
            if "c" in abl: work = {n: (work[n] if n in (0, 3) else []) for n in range(16)}
        else:
            work[0] = ([] if b2 else ["s_barrier"]) + [f"ds_read_b128 {r(vPq)}, v{vSl} offset:{LDS_PQ}"]
            if la == 0:
                work[3] = kread(vKa, 0) + A2
                work[7] = kread(vKb, 1) + merge([A3, B2], A2) + B3 + zm
            elif la == 1:
                work[3] = kread(vKa, 0)
                for i, c in enumerate(split(A2, 3)): work[4+i] += c
                work[7] = kread(vKb, 1) + merge([A3, B2], A2) + B3 + zm
            elif la == 2:
                work[3] = kread(vKa, 0)
                for i, c in enumerate(split(A2 + A3, 3)): work[4+i] += c
                work[7] = kread(vKb, 1) + B2 + B3 + zm
            elif la == 3:
                cs_ = split(A2 + A3, 4)
                work[3] = kread(vKa, 0) + cs_[0]
                for i in range(1, 4): work[3+i] += cs_[i]
                work[7] = kread(vKb, 1) + B2 + B3 + zm
            elif la == 4:
                work[3] = kread(vKa, 0)
                work[7] = kread(vKb, 1) + A2 + merge([A3, B2[1:]], A2) + B3 + zm
            work[7] += [f"v_mul_f32 v{vX}, v{vPq}, v{vZ}"] + [f"v_fmac_f32 v{vX}, v{vPq+k}, v{vZ+k}" for k in range(1, 4)]
            work[7] += [f"v_mov_b32 v{vT[0]}, v{vX}", f"v_permlane32_swap_b32 v{vX}, v{vT[0]}", f"v_add_f32 v{vX}, v{vX}, v{vT[0]}",
                        f"v_mov_b32 v{vT[0]}, v{vX}", f"v_permlane16_swap_b32 v{vX}, v{vT[0]}", f"v_add_f32 v{vX}, v{vX}, v{vT[0]}"]
        work[9] += perms(0); work[11] += perms(1); work[13] += perms(2); work[15] += pv()
        o = []; issued = L
        for n in range(16):
            if not last:
                x = issue(issued % 16, Tp[n]-1); issued += 1
                if cp:
                    k = x.index(f"s_waitcnt vmcnt({Tp[n]-1})")
                    y = [x[k]]
                    if (tabm or qm) and Tmp[n] < Tp[n]: y += [f"s_cmp_eq_u32 s{sLvl}, 0", f"s_cbranch_scc1 L_t{n}", f"s_waitcnt vmcnt({Tmp[n]-1})"]
                    if T1 > Tp[n]: y = [f"s_waitcnt vmcnt({T1-1})", f"s_cbranch_vccnz L_t{n}"] + y
                    if len(y) > 1: y += [f"L_t{n}:"]
                    x = x[:k] + y + x[k+1:]
                if sw:
                    k = x.index(f"s_waitcnt vmcnt({Tp[n]-1})")
                    x = x[:k] + [f"s_cbranch_vccnz L_t{n}", x[k], f"L_t{n}:", f"s_waitcnt vmcnt({L-1})"] + x[k+1:]
                o += x
            else:
                if dq:
                    def seq(D_, st):
                        x = []; tg = min(16, n+D_+1)
                        if st < tg:
                            x += issue(st, min(st-n-1, D_-1)); st += 1
                            while st < tg: x += load(st); st += 1
                        else: x.append(f"s_waitcnt vmcnt({st-n-1})")
                        return x, st
                    if n == 0:
                        o += [f"s_cmp_lt_u32 s{sCw}, {dq}", "s_cselect_b64 vcc, -1, 0"]; issued2 = issued
                    x1, i1 = seq(Dlast, issued); x2, i2 = seq(Dd, issued2)
                    if x1 == x2: o += x1
                    else: o += [f"s_cbranch_vccnz L_d{n}"] + x1 + [f"s_branch L_e{n}", f"L_d{n}:"] + x2 + [f"L_e{n}:"]
                    issued, issued2 = i1, i2
                    o += work[n]; continue
                tgt = min(16, n+Dlast+1)
                def trim(x):
                    if not nd: return x
                    k = max(i for i, t in enumerate(x) if t.startswith("buffer")); return x[:k+1]
                if issued < tgt:
                    o += trim(issue(issued, min(issued-n-1, Dlast-1))); issued += 1
                    while issued < tgt: o += trim(load(issued)); issued += 1
                elif nd and not work[n]: pass
                else: o.append(f"s_waitcnt vmcnt({issued-n-1})")
            o += work[n]
        return o
    def stampat(i, mode=(1,)):
        if stamp in (3, 4) and i in (0, 4): mode = (stamp,)
        if stamp == 5 and i == 0: mode = (5,)
        return [f"s_memrealtime s[{sSt+2*i}:{sSt+2*i+1}]"] if stamp in mode else []
    P = []; A = P.append
    if pr:
        A("s_load_dwordx4 s[4:7], s[0:1], 8")
        if cp: A(f"s_load_dwordx2 s[{sCtr}:{sCtr+1}], s[0:1], 48")
    A("s_cmp_ge_u32 s2, 256"); A("s_cbranch_scc1 L_end")
    P += stampat(0)
    if not pr: A("s_load_dwordx4 s[4:7], s[0:1], 8")
    A("v_lshrrev_b32 v12, 6, v0"); A("v_and_b32 v0, 63, v0")
    A(f"v_readfirstlane_b32 s{sWave}, v12")
    A("v_lshrrev_b32 v13, 4, v0")
    A("v_and_b32 v14, 15, v0")
    A(f"v_lshlrev_b32 v{vSl}, 4, v0")
    A("s_lshr_b32 s3, s2, 1")
    A(f"s_cmp_eq_u32 s{sWave}, 4"); A("s_cbranch_scc1 L_helper")
    if pos["g"] == [8, 9]:
        A(f"v_mov_b32 v{vVo}, v{vSl}")
    else:
        A(f"v_and_b32 v15, 1, v13"); A(f"v_lshlrev_b32 v15, {pos['g'][0]}, v15"); A(f"v_lshl_add_u32 v15, v14, 4, v15")
        A(f"v_lshrrev_b32 v16, 1, v13"); A(f"v_lshl_add_u32 v{vVo}, v16, {pos['g'][1]}, v15")
    A("v_lshlrev_b32 v15, 6, v13"); A(f"v_xor_b32 v{vKo[0]}, v15, v{vVo}")
    for j in range(1, 4): A(f"v_xor_b32 v{vKo[j]}, {16*j | (0 if simple else jofs(j))}, v{vKo[0]}")
    A("s_lshl_b32 s3, s3, 21")
    A(f"s_and_b32 s{sK0}, s2, 1"); A(f"s_lshl_b32 s{sK0}, s{sK0}, {pos['h'][0]}")
    A(f"s_and_b32 s{sK1}, s{sWave}, 1"); A(f"s_lshl_b32 s{sK1}, s{sK1}, {pos['w'][0]}"); A(f"s_or_b32 s{sK0}, s{sK0}, s{sK1}")
    A(f"s_lshr_b32 s{sK1}, s{sWave}, 1"); A(f"s_lshl_b32 s{sK1}, s{sK1}, {pos['w'][1]}"); A(f"s_or_b32 s{sK0}, s{sK0}, s{sK1}")
    A(f"s_or_b32 s{sK1}, s{sK0}, {1 << pos['c'][0]}")
    A(f"s_mov_b32 s{sV0}, s{sK0}"); A(f"s_mov_b32 s{sV1}, s{sK1}")
    A(f"s_lshl_b32 s{sMa}, s{sWave}, 13"); A(f"s_add_u32 s{sMb}, s{sMa}, 4096")
    A("s_mov_b32 s10, 0x200000"); A("s_mov_b32 s11, 0x20000"); A("s_mov_b32 s14, 0x200000"); A("s_mov_b32 s15, 0x20000")
    l0 = load(0); k0 = next(i for i, t in enumerate(l0) if t.startswith("buffer"))
    if pr: P += l0[:k0]
    A("s_waitcnt lgkmcnt(0)")
    A("s_add_u32 s8, s4, s3"); A("s_addc_u32 s9, s5, 0")
    if not pr: A("s_add_u32 s12, s6, s3"); A("s_addc_u32 s13, s7, 0")
    for n in range(T0):
        P += load(n) if (n or not pr) else l0[k0:]
        if n == 0: P += stampat(1, (5,))
        if n == 3 and pr: A("s_add_u32 s12, s6, s3"); A("s_addc_u32 s13, s7, 0")
    P += stampat(2, (5,))
    if cp:
        if not pr: A(f"s_load_dwordx2 s[{sCtr}:{sCtr+1}], s[0:1], 48")
        cpm = sum(1 << (NT-1-x) for x in [int(x) for x in cp.split(".")] + [2])
        A(f"s_cmp_eq_u32 s{sWave}, 0"); A(f"s_cselect_b32 s{sMA}, {cpm:#x}, 0")
        if dp:
            A("s_bitcmp1_b32 s2, 0"); A(f"s_cselect_b32 s{sMB}, s{sMA}, 0"); A(f"s_cselect_b32 s{sMA}, 0, s{sMA}")
        A(f"s_mov_b32 s{sPend}, 0"); A(f"s_mov_b32 s{sLvl}, 0"); A("s_mov_b64 vcc, 0"); A(f"s_mov_b32 s{sBase}, 0")
    A("v_and_b32 v15, 3, v14"); A("v_lshlrev_b32 v15, 10, v15"); A("v_lshrrev_b32 v16, 2, v14"); A("v_lshl_add_u32 v15, v16, 8, v15")
    A("v_xor_b32 v16, v13, v14"); A("v_lshl_add_u32 v15, v16, 4, v15"); A(f"v_add_u32 v{vLa[0]}, s{sMa}, v15")
    for u in range(1, 4): A(f"v_xor_b32 v{vLa[u]}, {64*u}, v{vLa[0]}")
    consts = [f"s_mov_b32 s{sScale}, {SCALE:#x}", f"s_mov_b32 s{sScale+1}, {SCALE:#x}", f"s_mov_b32 s{sL2e}, {LOG2E:#x}", f"v_mov_b32 v{vEps}, {eps:#x}"]
    P += consts
    A(f"s_mov_b32 s{sPe}, 0x05040100"); A(f"s_mov_b32 s{sPo}, 0x07060302")
    for i in range(4):
        m = sum(1 << (16*g + 4*g + i) for g in range(4))
        A(f"s_mov_b32 s{sMask[i]}, {m & 0xffffffff:#x}"); A(f"s_mov_b32 s{sMask[i]+1}, {m >> 32:#x}")
    A(f"v_mov_b32 v{vNH}, -0.5")
    for i in range(4): A(f"v_mov_b32 v{vOne+i}, 0x3f803f80")
    P += stampat(3, (5,))
    for i in range(36): A(f"v_mov_b32 v{vAcc+i}, 0")
    A(f"s_lshl_b32 s{sTmp}, s{sWave}, 10"); A(f"v_add_u32 v{vRd}, s{sTmp}, v{vSl}")
    A(f"s_mov_b32 s{sIt}, {NT-1}")
    if cp:
        A(f"s_lshr_b32 s{sTmp}, s2, {G.bit_length()-1}"); A(f"s_mul_i32 s{sTmp}, s{sTmp}, {cs}"); A(f"s_add_u32 s{sTmp}, s{sTmp}, {co:#x}")
        A(f"v_mov_b32 v{vZero}, 0"); A(f"v_mov_b32 v{vCw}, {(255 | (255 << 8 if qm else 0)) if qt else (NT | (NT << 8 if tabm else 0))}")
        if qt: A(f"s_mov_b32 s{sQ4}, {4*(NT-1)+3}"); A(f"s_mov_b32 s{sCw}, 255"); A(f"s_mov_b32 s{sCm}, 255")
        if not pr: A("s_waitcnt lgkmcnt(0)")
        A(f"s_add_u32 s{sCtr}, s{sCtr}, s{sTmp}"); A(f"s_addc_u32 s{sCtr+1}, s{sCtr+1}, 0")
        A(f"ds_write_b32 v{vZero}, v{vCw} offset:{LDS_CW}")
    P += stampat(4, (5,))
    if stamp == 4:
        P += stampat(1, (4,)) + [f"s_waitcnt vmcnt({T0-1})"] + stampat(2, (4,))
    for n in range(T0, L): P += issue(n, T0-1)
    if stamp == 4: P += [f"s_waitcnt vmcnt({L-1-int(sti)})"] + stampat(3, (4,))
    P += stampat(1)
    Bd = ([f"s_cmp_le_u32 s{sIt}, {sw}", "s_cselect_b64 vcc, -1, 0"] if sw else []) + body(False) + sum([[f"s_cmp_lg_u32 s{sIt}, {NT-int(x)}", f"s_cbranch_scc1 L_st{k}"] + stampat(k+1, (3,)) + [f"L_st{k}:"] for k, x in enumerate(sti.split("."))] if stamp == 3 else [], []) + [f"s_sub_u32 s{sIt}, s{sIt}, 1", f"s_cmp_lg_u32 s{sIt}, 0", "s_cbranch_scc1 L_loop"]
    E = stampat(2) + body(True)
    A = E.append
    def fo(i, k): return f"v_mul_f32 v{vN+i}, v{vPq}, v{vAcc+4*i}" if k == 0 else f"v_fmac_f32 v{vN+i}, v{vPq+k}, v{vAcc+4*i+k}"
    if fm:
        n_pv = len(pv()); tail = E[-n_pv:]; del E[-n_pv:]
        p = perms(3); m = [t for t in tail if t.startswith("v_mfma")]
        E += p[:3] + [m[0], p[3], p[4], m[1], p[5], p[6], m[2], p[7]]
        order = [fo(i, k) for pair in range(4) for k in range(4) for i in (2*pair, 2*pair+1)]
        E += [m[3], m[4]] + order[0:3] + [m[5]] + order[3:6] + [m[6]] + order[6:9] + [m[7]] + order[9:]
        E += stampat(3)
    else:
        E += stampat(3)
        for k in range(4):
            for i in range(8): A(fo(i, k))
    for i in range(4): A(f"v_permlane32_swap_b32 v{vN+i}, v{vN+i+4}")
    for i in range(4): A(f"v_add_f32 v{vN+i}, v{vN+i}, v{vN+i+4}")
    for i in range(2): A(f"v_permlane16_swap_b32 v{vN+i}, v{vN+i+2}")
    for i in range(2): A(f"v_add_f32 v{vN+i}, v{vN+i}, v{vN+i+2}")
    A(f"v_mov_b32 v{vN+2}, v{vX}")
    A(f"ds_write_b96 v{vRd}, v[{vN}:{vN+2}] offset:{LDS_RED}"); A("s_waitcnt lgkmcnt(0)"); A("s_barrier")
    if stamp: A(f"s_mov_b32 s{sRole}, 0"); A("s_branch L_fin")
    else: A("s_endpgm")
    H = ["L_helper:"]; A = H.append
    PF = []
    if "d" in tch and po:
        A = PF.append
    if "d" in tch:
        A("s_getpc_b64 s[12:13]"); A("L_pc0:"); A(f"s_sub_u32 s12, s12, L_pc0-{KN}"); A("s_subb_u32 s13, s13, 0")
        A("v_lshlrev_b32 v18, 6, v0")
        A("global_load_dword v19, v18, s[12:13]"); A("v_add_u32 v18, 4096, v18"); A(f"v_min_u32 v18, L_end-{KN}, v18"); A("global_load_dword v19, v18, s[12:13]")
    A = H.append
    if "j" in tch: A("s_branch L_pad1"); A("L_back1:")
    A(f"s_load_dwordx2 s[{sQ}:{sQ+1}], s[0:1], 0")
    A(f"s_load_dwordx2 s[8:9], s[0:1], 24")
    A(f"s_load_dwordx2 s[{sOutP}:{sOutP+1}], s[0:1], 32")
    A(f"s_load_dwordx4 s[{sDbg}:{sDbg+3}], s[0:1], 40")
    A("v_lshlrev_b32 v16, 4, v13")
    A("v_lshl_add_u32 v17, v14, 8, v16")
    A(f"v_lshlrev_b32 v{vOut}, 4, v14"); A(f"v_lshl_add_u32 v{vOut}, v13, 2, v{vOut}")
    A("s_mov_b32 s10, 4096"); A("s_mov_b32 s11, 0x20000")
    A(f"s_lshl_b32 s{sTmp}, s3, 8"); A(f"s_mul_i32 s{sTmp+1}, s3, {sst}")
    A("s_waitcnt lgkmcnt(0)")
    if warm & 2:
        A("s_lshl_b32 s12, s3, 21"); A("s_add_u32 s6, s6, s12"); A("s_addc_u32 s7, s7, 0")
        A("v_mov_b32 v18, 0"); A("s_mov_b64 exec, 1"); A("global_load_dword v19, v18, s[6:7] nt"); A("s_mov_b64 exec, -1")
    for u in range(4):
        A(f"s_mov_b32 m0, {LDS_OM + 1024*u - 64*u}")
        A(f"buffer_load_dwordx4 v17, s[8:11], 0 offen offset:{64*u} lds")
    H += PF
    A(f"s_add_u32 s{sQ}, s{sQ}, s{sTmp}"); A(f"s_addc_u32 s{sQ+1}, s{sQ+1}, 0")
    A(f"s_add_u32 s{sOutP}, s{sOutP}, s{sTmp}"); A(f"s_addc_u32 s{sOutP+1}, s{sOutP+1}, 0")
    A(f"s_add_u32 s{sSlot}, s{sDbg+2}, s{sTmp+1}"); A(f"s_addc_u32 s{sSlot+1}, s{sDbg+3}, 0")
    if dump:
        A("s_cmp_lg_u32 s2, 0"); A("s_cbranch_scc1 L_nodump")
        A("v_lshlrev_b32 v18, 2, v0"); A("v_cmp_gt_u32 vcc, 14, v0"); A("s_and_saveexec_b64 s[54:55], vcc")
        A("global_load_dword v19, v18, s[0:1]"); A("s_waitcnt vmcnt(0)"); A(f"global_store_dword v18, v19, s[{sDbg}:{sDbg+1}]"); A("s_waitcnt vmcnt(0)")
        A("s_mov_b64 exec, s[54:55]")
        A("L_nodump:")
        A(f"s_andn2_b32 s{sTmp}, s3, 3"); A(f"s_add_u32 s{sTmp}, s{sTmp}, 64")
        A(f"s_add_u32 s{sDbg}, s{sDbg}, s{sTmp}"); A(f"s_addc_u32 s{sDbg+1}, s{sDbg+1}, 0")
        A(f"s_and_b32 s{sFsh}, s3, 3"); A(f"s_lshl_b32 s{sFsh}, s{sFsh}, 3")
    else:
        A(f"s_lshr_b32 s{sTmp}, s3, 1"); A(f"s_lshl_b32 s{sTmp}, s{sTmp}, 2")
        A(f"s_add_u32 s{sDbg}, s{sDbg}, s{sTmp}"); A(f"s_addc_u32 s{sDbg+1}, s{sDbg+1}, 0")
        A(f"s_and_b32 s{sFsh}, s3, 1"); A(f"s_lshl_b32 s{sFsh}, s{sFsh}, 4")
    H += consts
    if pref:
        A("s_getpc_b64 s[4:5]"); A("L_pc:"); A("s_sub_u32 s4, s4, L_pc-L_loop"); A("s_subb_u32 s5, s5, 0")
        A("v_lshlrev_b32 v18, 6, v0")
        A("global_load_dword v19, v18, s[4:5]"); A("v_add_u32 v18, 4096, v18"); A("global_load_dword v19, v18, s[4:5]")
    A("s_waitcnt vmcnt(0)" if not (pref or PF) else "s_waitcnt vmcnt(2)"); A("s_barrier")
    H += stampat(1)
    for u in range(4): A(f"global_load_dwordx4 {r(vQ+4*u)}, v16, s[{sQ}:{sQ+1}] offset:{64*u}")
    H += omread()
    A(f"s_and_b32 s{sRole}, s2, 1"); A(f"s_add_u32 s{sRole}, s{sRole}, 1")
    A(f"v_mul_u32_u24 v{vRd}, {ss}, v0")
    A(f"global_load_dwordx3 v[{vOld}:{vOld+2}], v{vRd}, s[{sSlot}:{sSlot+1}] sc1")
    A(f"s_cmp_eq_u32 s{sRole}, 1"); A("s_cbranch_scc0 L_noflag")
    A(f"s_lshl_b32 s{sFlag}, 1, s{sFsh}")
    A("s_waitcnt vmcnt(0)")
    if "f" not in abl: A(f"s_atomic_add s{sFlag}, s[{sDbg}:{sDbg+1}], 0")
    A("L_noflag:")
    if warm & 1: A(f"global_load_dword v19, v{vOut}, s[{sOutP}:{sOutP+1}]")
    A("s_waitcnt vmcnt(0) lgkmcnt(0)")
    H += phiq()
    A(f"ds_write_b128 v{vSl}, {r(vPq)} offset:{LDS_PQ}")
    A("s_waitcnt lgkmcnt(0)"); A("s_barrier")
    H += stampat(2)
    A(f"s_cmp_eq_u32 s{sRole}, 1"); A("s_cbranch_scc1 L_poll")
    A("L_flagchk:")
    if "g" not in abl:
        assert "f" not in abl
        if fl == "atom":
            A(f"s_mov_b32 s{sFlag}, 0"); A(f"s_atomic_add s{sFlag}, s[{sDbg}:{sDbg+1}], 0 glc"); A("s_waitcnt lgkmcnt(0)")
        elif fl == "sload":
            A(f"s_load_dword s{sFlag}, s[{sDbg}:{sDbg+1}], 0 glc"); A("s_waitcnt lgkmcnt(0)")
        else:
            A("v_mov_b32 v18, 0"); A(f"global_load_dword v19, v18, s[{sDbg}:{sDbg+1}] sc1"); A("s_waitcnt vmcnt(0)"); A(f"v_readfirstlane_b32 s{sFlag}, v19")
        A(f"s_lshr_b32 s{sTmp}, s{sFlag}, s{sFsh}"); A(f"s_and_b32 s{sTmp}, s{sTmp}, 0xff"); A("s_cbranch_scc0 L_flagchk")
    for i in range(3): A(f"v_not_b32 v{vOld+i}, v{vOld+i}")
    A("s_branch L_hwait")
    A("L_poll:")
    def pl(rg): return f"global_load_dwordx3 v[{rg}:{rg+2}], v{vRd}, s[{sSlot}:{sSlot+1}] sc1"
    def chk(rg):
        for i in range(3): A(f"v_xor_b32 v{vT[i]}, v{rg+i}, v{vOld+i}")
        A(f"v_and_b32 v{vT[0]}, v{vT[0]}, v{vT[1]}"); A(f"v_and_b32 v{vT[2]}, 1, v{vT[2]}"); A(f"v_and_b32 v{vT[0]}, v{vT[0]}, v{vT[2]}")
        A(f"v_cmp_eq_u32 vcc, 0, v{vT[0]}")
    if pp == 1:
        A(pl(vPoll)); A("s_waitcnt vmcnt(0)"); chk(vPoll); A("s_cbranch_vccnz L_poll")
        for i in range(3): A(f"v_and_b32 v{vPoll+i}, -2, v{vPoll+i}")
    else:
        regs_ = [vB+4*i for i in range(pp)]
        for i in range(pp):
            A(pl(regs_[i]))
            if i+1 < pp: A(f"s_sleep {sl}")
        A("L_poll2:")
        for i in range(pp):
            A(f"s_waitcnt vmcnt({pp-1})"); chk(regs_[i]); A(f"s_cbranch_vccz L_got{i}"); A(pl(regs_[i]))
        A("s_branch L_poll2")
        for i in range(pp):
            A(f"L_got{i}:")
            for k in range(3): A(f"v_and_b32 v{vPoll+k}, -2, v{regs_[i]+k}")
            if i+1 < pp: A("s_branch L_hwait")
    A("L_hwait:")
    A("s_barrier")
    H += stampat(3)
    for w in range(4): A(f"ds_read_b96 v[{vV+4*w}:{vV+4*w+2}], v{vSl} offset:{LDS_RED+1024*w}")
    A("s_waitcnt lgkmcnt(2)")
    for i in range(3): A(f"v_add_f32 v{vN+i}, v{vV+i}, v{vV+4+i}")
    A("s_waitcnt lgkmcnt(0)")
    for i in range(3): A(f"v_add_f32 v{vV+8+i}, v{vV+8+i}, v{vV+12+i}")
    for i in range(3): A(f"v_add_f32 v{vN+i}, v{vN+i}, v{vV+8+i}")
    A(f"s_cmp_eq_u32 s{sRole}, 1"); A("s_cbranch_scc1 L_cons")
    for i in range(3): A(f"v_bfi_b32 v{vN+i}, 1, v{vOld+i}, v{vN+i}")
    if "d" not in abl: A(f"global_store_dwordx3 v{vRd}, v[{vN}:{vN+2}], s[{sSlot}:{sSlot+1}] {sf}")
    else: assert "p" in abl
    A("s_branch L_fin" if stamp else "s_endpgm")
    A("L_cons:")
    for i in range(3): A(f"v_add_f32 v{vN+i}, v{vN+i}, v{vPoll+i}")
    for i in range(3): A(f"v_cvt_pk_bf16_f32 v{vN+i}, 0, v{vN+i}")
    A(f"v_add_f32 v{vN+2}, v{vN+2}, v{vEps}"); A(f"v_cvt_pk_bf16_f32 v{vN+2}, 0, v{vN+2}")
    den = vN+2; dv = []
    for i in range(2):
        n = vN+i; a, b, c, d, e = [vKa+5*i+k for k in range(5)]
        dv.append([f"v_div_scale_f32 v{a}, s[{sTmp}:{sTmp+1}], v{den}, v{den}, v{n}", f"v_rcp_f32 v{b}, v{a}",
            f"v_div_scale_f32 v{c}, vcc, v{n}, v{den}, v{n}", f"v_fma_f32 v{d}, -v{a}, v{b}, 1.0", f"v_fmac_f32 v{b}, v{d}, v{b}",
            f"v_mul_f32 v{d}, v{c}, v{b}", f"v_fma_f32 v{e}, -v{a}, v{d}, v{c}", f"v_fmac_f32 v{d}, v{e}, v{b}",
            f"v_fma_f32 v{a}, -v{a}, v{d}, v{c}", f"v_div_fmas_f32 v{a}, v{a}, v{b}, v{d}", f"v_div_fixup_f32 v{n}, v{a}, v{den}, v{n}"])
    if fm:
        d0, d1 = dv
        d1[2] = d1[2].replace("vcc", f"s[{sT2+1}:{sT2+2}]"); d1[0] = d1[0].replace(f"s[{sTmp}:{sTmp+1}]", f"s[{sT2+1}:{sT2+2}]")
        for x, y in zip(d0[:9], d1[:9]): H += [x, y]
        H += [d0[9], f"s_mov_b64 vcc, s[{sT2+1}:{sT2+2}]", d0[10], d1[9], d1[10]]
    else: H += dv[0] + dv[1]
    A(f"v_cvt_pk_bf16_f32 v{vN}, v{vN}, v{vN+1}")
    A(f"global_store_dword v{vOut}, v{vN}, s[{sOutP}:{sOutP+1}] {of}")
    A("L_fin:")
    if stamp:
        A("s_waitcnt vmcnt(0)")
        H += stampat(4)
        A(f"s_getreg_b32 s{sTmp}, hwreg(HW_REG_XCC_ID)")
        A("s_load_dwordx2 s[4:5], s[0:1], 48")
        A(f"s_mul_i32 s3, s2, 5"); A(f"s_add_u32 s3, s3, s{sWave}"); A("s_lshl_b32 s3, s3, 6")
        A("s_waitcnt lgkmcnt(0)")
        A("s_add_u32 s4, s4, 0x20000000"); A("s_addc_u32 s5, s5, 0")
        for i in range(10): A(f"v_mov_b32 v{vKa+i}, s{sSt+i}")
        A(f"v_mov_b32 v{vKa+10}, s{sTmp}"); A(f"v_mov_b32 v{vKa+11}, s{sRole}")
        A(f"s_getreg_b32 s{sTmp}, hwreg(HW_REG_HW_ID)"); A(f"v_mov_b32 v{vKa+12}, s{sTmp}")
        A("v_mov_b32 v1, s3"); A("s_mov_b64 exec, 1")
        for i in range(4): A(f"global_store_dwordx4 v1, {r(vKa+4*i)}, s[4:5] offset:{16*i}")
    A("L_end:"); A("s_endpgm")
    Pp = pad(P)
    Bp = pad(pad(Bd, hist_of(Pp)), hist_of(pad(Bd, hist_of(Pp))))
    assert len(pad(Bp, hist_of(Bp))) == len(Bp) and len(pad(Bp, hist_of(Pp))) == len(Bp)
    Ep = pad(E, hist_of(Bp))
    k = Pp.index("s_cbranch_scc1 L_helper")
    Hp = pad(H, hist_of(Pp[:k+1]))
    Lx = [HEADER.rstrip(), f"; @launch grid=(256,1,1) block=({(W+1)*64},1,1) lds={LDS}",
         '.amdgcn_target "amdgcn-amd-amdhsa--gfx950"', ".text", f".globl {KN}"] + ([f".p2align {al}"] if al != 8 else []) + ([f".fill {skip//4}, 4, 0xbf800000"] if skip else []) + [".p2align 8", f".type {KN},@function", f"{KN}:"]
    fmt = lambda t: t if t.endswith(":") or t.startswith(".") else "    " + t
    if hin:
        j = max(i for i, t in enumerate(Hp) if t.startswith(("buffer_load_dwordx4 v17", "global_load_dword v19, v18, s[12:13]"))) + 1
        Pp = Pp[:k] + ["s_cbranch_scc0 L_stream"] + Hp[1:j] + ["s_branch L_helper", "L_stream:"] + Pp[k+1:]
        Hp = Hp[:1] + Hp[j:]
    if "j" in tch: Pp = Pp + ["s_branch L_loop", "L_pad1:", "s_branch L_back1"]
    Lx += [fmt(t) for t in Pp] + [".p2align 6", "L_loop:"] + [fmt(t) for t in Bp] + [fmt(t) for t in Ep] + [fmt(t) for t in Hp]
    Lx += ['.section .rodata,"a"', ".p2align 6", f".amdhsa_kernel {KN}",
          f"  .amdhsa_next_free_vgpr {NV}", "  .amdhsa_next_free_sgpr 88", f"  .amdhsa_accum_offset {NV}",
          "  .amdhsa_group_segment_fixed_size 0", "  .amdhsa_kernarg_size 56", "  .amdhsa_user_sgpr_count 2",
          "  .amdhsa_user_sgpr_kernarg_segment_ptr 1", "  .amdhsa_system_sgpr_workgroup_id_x 1",
          "  .amdhsa_float_denorm_mode_32 3", ".end_amdhsa_kernel"]
    return "\n".join(Lx) + "\n"
def name(**kw):
    import hashlib
    full = "_".join(f"{k}{str(v).replace(' ','+')}" for k, v in kw.items())
    return "k4_" + (full if len(full) < 100 else hashlib.md5(full.encode()).hexdigest()[:6] + "_" + "_".join(f"{k}{kw[k]}" for k in ("stamp","bits","dp","Dlast","Ld","T0") if k in kw))
if __name__ == "__main__":
    if sys.argv[1] == "one":
        kw = eval("dict(" + (sys.argv[3] if len(sys.argv) > 3 else "") + ")")
        open(sys.argv[2], "w").write(gen(**kw))
    else:
        from build import build
        exec(open(sys.argv[1]).read())
        with open(sys.argv[2], "w") as f:
            for kw in variants: f.write(build(gen(**kw), name(**kw)) + "\n")
```

```python
import gen4, re, sys
cfg = eval(open("base.txt").read())
src = gen4.gen(**cfg)
L = src.split("\n")
k = next(i for i, t in enumerate(L) if t.startswith(".amdgcn_target"))
DOC = """;
;
;
;
;   s66-80 pacing-by-rank state, vcc = keep 6 loads in flight, s72 = keep 4.
; Generated by a script of my own; s_nop lines are the wait states of the ISA hazard tables."""
DOC = DOC.replace("pacing-by-rank", "queue-depth control")
L = L[:k] + DOC.split("\n") + L[k:]
notes = {
 "    s_getpc_b64 s[12:13]": "helper wave, part 1: pull the kernel's code into L2, start the omega loads",
 "L_stream:": "streaming waves: per-lane source offsets, descriptors, first loads",
 "L_loop:": "one tile: 16 slots = wait (queue depth) + next load + a share of the arithmetic",
 "    s_cbranch_scc1 L_noom": "first tile only: omega has been staged by the helper",
 "    s_cbranch_scc1 L_nodec": "wave 0, ticket back: rank -> for how many quarter tiles to run deeper / shallower",
 "    s_cbranch_scc0 L_noticka": "consumer workgroups take their ticket here",
 "    s_cbranch_scc0 L_notickb": "producer workgroups take it later in the tile, which lets them finish a little earlier",
 "L_helper:": "helper wave, part 2",
 "L_noflag:": "phi(q), laid out like the rows of the kv accumulators",
 "L_flagchk:": "producer: wait until the consumer has read the slot's old contents",
 "L_poll:": "consumer: wait until every word of the slot carries the flipped tag",
 "L_hwait:": "the four waves' sums are in LDS",
 "L_cons:": "out = bf16(num) / bf16(bf16(den) + 1e-6)",
}
out = []; seen = set()
for i, t in enumerate(L):
    if t in notes and t not in seen:
        seen.add(t); out.append("    ; ---- " + notes[t])
    out.append(t)
    if t == "    s_cbranch_scc1 L_loop": out.append("    ; ---- last tile (no further loads), then fold with phi(q)")
assert len(seen) == len(notes)
open(sys.argv[1], "w").write("\n".join(out))
```
